```python
import torch

def _softmax(x, axis=-1):
    return torch.softmax(x, dim=axis)
def _gelu(x):
    return torch.nn.functional.gelu(x, approximate="tanh")
def _silu(x):
    return torch.nn.functional.silu(x)
def _sigmoid(x):
    return torch.sigmoid(x)
def _layernorm(x, axis=-1, eps=1e-5):
    m = x.mean(dim=axis, keepdim=True)
    v = x.var(dim=axis, keepdim=True, unbiased=False)
    return (x - m) / torch.sqrt(v + eps)
def _scatter_add(tgt, idx, src, axis=0):
    return tgt.clone().index_add_(axis, idx, src)
def _segment_sum(src, seg, n):
    out = torch.zeros((n,) + src.shape[1:], dtype=src.dtype)
    return out.index_add_(0, seg, src)
def _pad(x, pw):
    flat = tuple(v for pair in reversed(pw) for v in pair)
    return torch.nn.functional.pad(x, flat)

kernel_name = 'recurrent_scan__ssm_conv_h3__dense_activation_silu__prompt'

def setup_inputs():

    _w = (lambda a: (lambda t: t.to(torch.bfloat16) if t.is_floating_point() else t)(torch.as_tensor(a)))
    def _A_setup():
        B, S, D = 1, 2048, 640
        ks = 4
        return {
            "q": _w((lambda *s: torch.randn(*s, dtype=torch.bfloat16) * 0.05)(B, S, D)),
            "k": _w((lambda *s: torch.randn(*s, dtype=torch.bfloat16) * 0.8)(B, S, D)),
            "v": _w((lambda *s: torch.randn(*s, dtype=torch.bfloat16) * 0.8)(B, S, D)),
            "shift_k": _w((lambda *s: torch.randn(*s, dtype=torch.bfloat16) * 0.8)(D, ks) * 0.5),
            "ssm_k": _w((lambda *s: torch.randn(*s, dtype=torch.bfloat16) * 0.8)(D, S) * (1.0 / S ** 0.5)),
            "ssm_D": _w((lambda *s: torch.randn(*s, dtype=torch.bfloat16) * 0.8)(D)),
        }
    _A_in = _A_setup()

    def _B_setup():
        B, S, D, F = 1, 2048, 640, 1728
        return {
            "x": _w((lambda *s: torch.randn(*s, dtype=torch.bfloat16) * 0.05)(B, S, D)),
            "w1": _w((lambda *s: torch.randn(*s, dtype=torch.bfloat16) * 0.8)(D, F) * (D ** -0.5)),
            "w2": _w((lambda *s: torch.randn(*s, dtype=torch.bfloat16) * 0.2)(F, D) * (F ** -0.5)),
        }
    _B_in = _B_setup()

    return {
        "A_q": _A_in["q"],
        "A_k": _A_in["k"],
        "A_v": _A_in["v"],
        "A_shift_k": _A_in["shift_k"],
        "A_ssm_k": _A_in["ssm_k"],
        "A_ssm_D": _A_in["ssm_D"],
        "B_x": _B_in["x"],
        "B_w1": _B_in["w1"],
        "B_w2": _B_in["w2"],
    }

def reference(A_q, A_k, A_v, A_shift_k, A_ssm_k, A_ssm_D, B_x, B_w1, B_w2):
    def _A_ref(q, k, v, shift_k, ssm_k, ssm_D):
        B, S, D = q.shape
        ks = shift_k.shape[-1]
        k_pad = _pad(k, ((0, 0), (ks - 1, 0), (0, 0)))
        k_shift = torch.zeros_like(k)
        for t in range(ks):
            k_shift = k_shift + k_pad[:, t:t + S, :] * shift_k[:, ks - 1 - t][None, None, :]
        kv = k_shift * v
        L = 2 * S
        kv_pad = _pad(kv, ((0, 0), (0, S), (0, 0)))
        kf_pad = _pad(ssm_k, ((0, 0), (0, S)))
        kv_f = (lambda x, axes=(-2,-1): torch.fft.rfft2(x.float(), dim=axes))(kv_pad[:, None, :, :], axes=(1, 2))
        kf_f = (lambda x, axes=(-2,-1): torch.fft.rfft2(x.float(), dim=axes))(kf_pad[:, None, :], axes=(1, 2))
        kf_f = (lambda x, *d: x.permute(*d))(kf_f, 1, 2, 0)
        y_f = kv_f * kf_f[None, :, :, :]
        y = (lambda x, s, axes=(-2,-1): torch.fft.irfft2(x, s=s, dim=axes).to(torch.bfloat16))(y_f, (1, L), axes=(1, 2))[:, 0, :S, :]
        y = y + kv * ssm_D[None, None, :]
        return q * y

    def _B_ref(x, w1, w2):
        h = torch.einsum("bsd,df->bsf", x, w1)
        h = _silu(h)
        out = torch.einsum("bsf,fd->bsd", h, w2)
        return out

    x = A_q
    xn = _layernorm(x, axis=-1)
    s = _A_ref(xn, A_k, A_v, A_shift_k, A_ssm_k, A_ssm_D)
    g = _silu(_B_ref(xn, B_w1, B_w2))
    return x + s * g
```

```python
import re
TRANS = ("v_exp_f32","v_log_f32","v_rcp_f32","v_rsq_f32","v_sqrt_f32","v_sin_f32","v_cos_f32")
def regs_of(tok):
    tok = tok.strip()
    neg = tok.lstrip('-')
    m = re.fullmatch(r"(?:abs\()?([vsa])(\d+)\)?", neg)
    if m: return [(m.group(1), int(m.group(2)))]
    m = re.fullmatch(r"([vsa])\[(\d+):(\d+)\]", neg)
    if m: return [(m.group(1), i) for i in range(int(m.group(2)), int(m.group(3))+1)]
    if neg == "vcc": return [("s", 106), ("s", 107)]
    if neg == "exec": return [("s", 126), ("s", 127)]
    if neg == "m0": return [("s", 124)]
    return []

class Ins:
    def __init__(self, text):
        self.text = text
        t = text.split(";")[0].strip()
        self.op = t.split()[0]
        rest = t[len(self.op):].strip()
        ops = [o.strip() for o in rest.split(",")] if rest else []
        if ops:
            last = ops[-1].split()
            ops[-1] = last[0] if last else ""
            self.mods = last[1:]
        else:
            self.mods = []
        self.ops = ops
        op = self.op
        self.is_mfma = op.startswith("v_mfma")
        self.is_valu = op.startswith("v_") and not self.is_mfma
        self.is_trans = op in TRANS
        self.is_dot = op.startswith("v_dot")
        self.is_vmem = op.startswith("buffer_") or op.startswith("global_")
        self.is_ds = op.startswith("ds_")
        self.is_salu = op.startswith("s_")
        r = [regs_of(o) for o in ops]
        self.dst = []; self.src = []
        if self.is_mfma:
            self.dst = r[0]; self.srcA = r[1]; self.srcB = r[2]; self.srcC = r[3]
            self.src = r[1]+r[2]+r[3]
            self.passes = 8 if "32x32" in op else 4
        elif self.is_valu:
            if op.startswith("v_cmp"):
                self.dst = r[0]; self.src = sum(r[1:], [])
            elif op.startswith("v_permlane") and "swap" in op:
                self.dst = r[0]+r[1]; self.src = r[0]+r[1]
            elif op in ("v_add_co_u32","v_sub_co_u32","v_addc_co_u32"):
                self.dst = r[0]+r[1]; self.src = sum(r[2:], [])
            else:
                self.dst = r[0]; self.src = sum(r[1:], [])
                if op.startswith("v_fmac") or op.startswith("v_dot2c") or op == "v_writelane_b32": self.src += r[0]
                if op == "v_cndmask_b32" and len(ops) == 3: self.src += regs_of("vcc")
        elif self.is_vmem:
            if "store" in op or ("atomic" in op) or ("lds" in self.mods) or op in ("buffer_wbl2","buffer_inv"):
                self.src = sum(r, [])
                if "lds" in self.mods: self.src += regs_of("m0")
                if "atomic" in op and "sc0" in self.mods: self.dst = r[0]
            else:
                self.dst = r[0]; self.src = sum(r[1:], [])
        elif self.is_ds:
            if op.startswith("ds_read") or op.startswith("ds_bpermute") or op.startswith("ds_swizzle"):
                self.dst = r[0]; self.src = sum(r[1:], [])
            else:
                self.src = sum(r, [])
        elif self.is_salu:
            if op.startswith("s_cmp") or op.startswith("s_cbranch") or op in ("s_waitcnt","s_barrier","s_nop","s_branch","s_endpgm","s_sleep","s_setprio"):
                self.src = sum(r, [])
            else:
                self.dst = r[0] if r else []; self.src = sum(r[1:], [])
        self.states = 1
        if op == "s_nop": self.states = int(ops[0]) + 1

class Asm:
    def __init__(self):
        self.lines = []
        self.hist = []
    def raw(self, text):
        self.lines.append(text)
    def label(self, name):
        self.lines.append(name + ":")
        for p in self.hist: p.states = 0
    def need(self, ins):
        need = 0
        dist = 0
        for p in reversed(self.hist):
            req = 0
            pd = set(p.dst)
            def ov(a, b): return bool(set(a) & set(b))
            if p.is_valu and not p.is_dot:
                if ins.is_mfma and ov(p.dst, ins.src): req = max(req, 2)
                sd = [x for x in p.dst if x[0] == "s"]
                if sd:
                    if ins.is_vmem and ov(sd, ins.src): req = max(req, 5)
                    if ins.is_valu and ov(sd, ins.src): req = max(req, 2)
                    if ins.op in ("v_readlane_b32","v_writelane_b32") and ov(sd, ins.src): req = max(req, 4)
                    if ov(sd, regs_of("exec")) and ins.is_mfma: req = max(req, 4)
                if ins.op in ("v_readfirstlane_b32","v_readlane_b32") and ov(p.dst, ins.src): req = max(req, 1)
                if ins.op.startswith("v_permlane") and ov(p.dst, ins.src): req = max(req, 2)
                if ins.is_valu and "dpp" in ins.op and ov(p.dst, ins.src): req = max(req, 2)
                if p.is_trans and ins.is_valu and not ins.is_trans and ov(p.dst, ins.src): req = max(req, 1)
                if p.is_trans and ins.is_mfma and ov(p.dst, ins.src): req = max(req, 2)
            if p.is_dot:
                if ins.is_mfma and ov(p.dst, ins.src): req = max(req, 3)
                if (ins.is_valu or ins.is_vmem or ins.is_ds) and (ov(p.dst, ins.src) or ov(p.dst, ins.dst)):
                    if ins.op == p.op and ins.is_dot and ov(p.dst, ins.dst) and not ov(p.dst, [x for x in ins.src if x not in ins.dst]):
                        pass
                    else: req = max(req, 3)
            if p.is_mfma:
                big = {4: 8, 8: 12}[p.passes]
                if ins.is_mfma:
                    if ov(p.dst, ins.srcA + ins.srcB): req = max(req, big)
                    if ov(p.dst, ins.srcC) and p.dst != ins.srcC: req = max(req, {4:6, 8:10}[p.passes])
                else:
                    if ov(p.dst, ins.src) or ov(p.dst, ins.dst): req = max(req, big)
                    if ins.is_valu and ov(p.srcC, ins.dst): req = max(req, {4:3, 8:7}[p.passes])
                    if (ins.is_ds or ins.is_vmem) and ov(p.srcC, ins.dst): req = max(req, {4:3, 8:7}[p.passes])
            if p.is_salu and ov(p.dst, regs_of("m0")) and ins.is_vmem and "lds" in ins.mods: req = max(req, 1)
            if p.is_vmem and "store" in p.op and ("x4" in p.op or "x3" in p.op) and ov(p.src, ins.dst): req = max(req, 2)
            if p.is_ds and p.op.startswith("ds_write_b128") and ov(p.src, ins.dst) and ins.is_valu: req = max(req, 2)
            need = max(need, req - dist)
            dist += p.states
            if dist > 24: break
        return need
    def __call__(self, text):
        for t in text.strip().split("\n"):
            t = t.strip()
            if not t or t.startswith(";"):
                if t: self.lines.append("    " + t)
                continue
            if t.endswith(":"):
                self.label(t[:-1]); continue
            ins = Ins(t)
            n = self.need(ins)
            while n > 0:
                k = min(n, 16)
                nop = Ins(f"s_nop {k-1}")
                self.lines.append(f"    s_nop {k-1}")
                self.hist.append(nop); n -= k
            self.lines.append("    " + t)
            self.hist.append(ins)
            if len(self.hist) > 64: self.hist = self.hist[-64:]
    def text(self):
        return "\n".join(self.lines) + "\n"
```

```python
import sys
from asmlib import Asm
NAME = "recurrent_scan__ssm_conv_h3__dense_activation_silu__prompt"
HP_OFF = 0
KVT_OFF = 0x700000
Y2T_OFF = 0xA00000
ST_OFF = 0xD00000
WS_BYTES = 0xE00000
XB = 2048*640*2

import os
STAMP = int(os.environ.get("STAMP", "0"))
STAMP_WG = int(os.environ.get("STAMP_WG", "0"))
class Stamper:
    def __init__(self, a): self.a = a; self.n = 0
    def __call__(self):
        if not STAMP: return
        self.a(f"""s_memtime s[92:93]
        s_waitcnt lgkmcnt(0)
        v_writelane_b32 v250, s92, {self.n}""")
        self.n += 1
    def flush(self, wave_sgpr):
        if not STAMP: return
        self.a(f"""s_cmp_lg_u32 s2, {STAMP_WG}
        s_cbranch_scc1 STAMP_SKIP{id(self)}
        s_cmp_lg_u32 {wave_sgpr}, {STAMP-1}
        s_cbranch_scc1 STAMP_SKIP{id(self)}
        s_load_dwordx2 s[92:93], s[0:1], 80
        s_waitcnt lgkmcnt(0)
        s_mov_b32 s96, s92
        s_and_b32 s97, s93, 0xffff
        s_mov_b32 s98, 256
        s_mov_b32 s99, 0x00020000
        v_mbcnt_lo_u32_b32 v251, -1, 0
        v_mbcnt_hi_u32_b32 v251, -1, v251
        v_lshlrev_b32 v251, 2, v251
        buffer_store_dword v250, v251, s[96:99], 0 offen
        STAMP_SKIP{id(self)}:""")

def srd(a, d, lo, nbytes):
    a(f"""s_mov_b32 s{d}, s{lo}
    s_and_b32 s{d+1}, s{lo+1}, 0xffff
    s_mov_b32 s{d+2}, {nbytes}
    s_mov_b32 s{d+3}, 0x00020000""")

def round_pair(a, x0, x1, tmp):
    a(f"""v_cvt_pk_bf16_f32 v{tmp}, v{x0}, v{x1}
    v_lshlrev_b32 v{x0}, 16, v{tmp}
    v_and_b32 v{x1}, 0xffff0000, v{tmp}""")

def silu_pair(a, x0, x1, t0, t1, dst):
    a(f"""v_mul_f32 v{t0}, s90, v{x0}
    v_mul_f32 v{t1}, s90, v{x1}
    v_exp_f32 v{t0}, v{t0}
    v_exp_f32 v{t1}, v{t1}
    v_add_f32 v{t0}, 1.0, v{t0}
    v_add_f32 v{t1}, 1.0, v{t1}
    v_rcp_f32 v{t0}, v{t0}
    v_rcp_f32 v{t1}, v{t1}
    v_mul_f32 v{t0}, v{x0}, v{t0}
    v_mul_f32 v{t1}, v{x1}, v{t1}
    v_cvt_pk_bf16_f32 v{dst}, v{t0}, v{t1}""")

W2P_OFF = 0xE00000
WS_BYTES = 0x1100000
K1_MISC = 131072
K1_ST = K1_MISC
K1_CSL = K1_ST + 4096
K1_LDS = K1_CSL + 1024
K1_KVS = 81920
def interleave(a, main, fill):
    n = len(main); m = len(fill); k = 0
    for i, x in enumerate(main):
        a(x)
        tgt = (m * (i+1) + n - 1) // n if i < n-1 else m
        while k < min(tgt, m):
            a(fill[k]); k += 1

def gen_k1(a):
    FB = [40, 88]
    ACC = 136
    CSA = 168
    S1, S2 = 176, 204
    XA = 180
    WA = 184
    a(f"""k1_kernel:
    s_cmp_ge_u32 s2, 256
    s_cbranch_scc1 K1_END
    s_load_dwordx4 s[36:39], s[0:1], 0
    s_load_dwordx4 s[40:43], s[0:1], 16
    s_load_dwordx4 s[44:47], s[0:1], 56
    s_load_dwordx2 s[60:61], s[0:1], 88
    v_lshrrev_b32 v1, 6, v0
    v_and_b32 v2, 63, v0
    v_readfirstlane_b32 s3, v1
    s_and_b32 s4, s2, 7
    s_lshr_b32 s5, s2, 3
    s_mul_i32 s6, s5, 37
    s_lshr_b32 s6, s6, 8             ; i/7 (i<32)
    s_mul_i32 s7, s6, 7
    s_sub_u32 s7, s5, s7             ; i%7
    s_lshr_b32 s32, s4, 1
    s_lshl_b32 s32, s32, 2
    s_add_u32 s6, s6, s32
    s_and_b32 s32, s4, 1
    s_mul_i32 s32, s32, 7
    s_add_u32 s7, s7, s32            ; colblk 0..13
    s_lshr_b32 s32, s3, 1            ; rg
    s_and_b32 s33, s3, 1             ; ch
    s_mov_b32 s90, 0xbfb8aa3b
    v_and_b32 v16, 15, v2
    v_lshrrev_b32 v17, 4, v2         ; g
    s_lshl_b32 s48, s3, 2
    v_add_u32 v13, s48, v17          ; p = 4w + lane>>4
    v_and_b32 v14, 7, v13
    v_lshlrev_b32 v14, 1, v14
    v_xor_b32 v14, v16, v14
    v_lshrrev_b32 v22, 2, v16        ; r
    v_and_b32 v23, 1, v17
    v_lshl_or_b32 v22, v23, 2, v22   ; p&7
    v_lshrrev_b32 v23, 1, v17
    v_lshl_or_b32 v23, v23, 4, v22   ; p
    v_lshlrev_b32 v23, 8, v23        ; p*256
    v_and_b32 v24, 1, v2
    v_lshl_add_u32 v23, v24, 3, v23  ; + (c&1)*8
    v_bfe_u32 v24, v2, 1, 1          ; c>>1
    v_lshlrev_b32 v22, 1, v22        ; (p&7)<<1
    s_waitcnt lgkmcnt(0)""")
    st = Stamper(a)
    if STAMP: a("v_mov_b32 v250, 0")
    st()
    srd(a, 28, 60, WS_BYTES)
    a("""s_cmp_ge_u32 s5, 28
    s_cbranch_scc1 K1_SPARE""")
    srd(a, 8, 36, XB)
    srd(a, 12, 44, 640*1728*2)
    a(f"""v_and_b32 v15, 0x13, v13
    v_and_b32 v18, 4, v13
    v_lshlrev_b32 v18, 1, v18
    v_or_b32 v15, v15, v18
    v_and_b32 v18, 8, v13
    v_lshrrev_b32 v18, 1, v18
    v_or_b32 v15, v15, v18
    s_movk_i32 s48, 3456
    v_mul_lo_u32 v15, v15, s48
    v_lshl_add_u32 v15, v14, 4, v15
    s_lshl_b32 s48, s7, 8
    v_add_u32 v15, s48, v15
    v_lshrrev_b32 v18, 3, v2
    v_and_b32 v19, 7, v2
    v_lshrrev_b32 v20, 1, v18        ; r8>>1 (0..3)
    v_xor_b32 v21, v19, v20          ; h=0 chunk
    v_xor_b32 v25, 4, v21            ; h=1 chunk
    s_lshl_b32 s48, s6, 7
    s_lshl_b32 s49, s3, 4
    s_add_u32 s48, s48, s49
    v_add_u32 v18, s48, v18
    s_movk_i32 s49, 1280
    v_mul_lo_u32 v18, v18, s49
    v_lshl_add_u32 v19, v25, 4, v18
    v_add_u32 v19, {8*1280}, v19     ; v19 = x src h=1
    v_lshl_add_u32 v18, v21, 4, v18  ; v18 = x src h=0
    s_lshl_b32 s52, s3, 11
    s_lshl_b32 s53, s3, 10
    s_add_u32 s53, s53, 16384""")
    def slot_items(j):
        sl = (j % 4) * 32768
        return [f"""s_add_u32 m0, s52, {sl}
        s_movk_i32 s55, {128*j}
        buffer_load_dwordx4 v18, s[8:11], s55 offen lds""",
        f"""s_add_u32 m0, s52, {sl+1024}
        s_mov_b32 s54, {2*j*32*3456}
        buffer_load_dwordx4 v19, s[8:11], s55 offen lds""",
        f"""s_add_u32 m0, s53, {sl}
        s_mov_b32 s56, {(2*j+1)*32*3456}
        buffer_load_dwordx4 v15, s[12:15], s54 offen lds""",
        f"""s_add_u32 m0, s53, {sl+8192}
        s_nop 0
        buffer_load_dwordx4 v15, s[12:15], s56 offen lds"""]
    for j in range(4):
        for it in slot_items(j): a(it)
    st()
    a(f"""s_lshl_b32 s48, s32, 12          ; rg*32*128
    s_lshl_b32 s49, s33, 11
    s_add_u32 s48, s48, s49
    v_lshlrev_b32 v25, 7, v16
    v_add_u32 v25, s48, v25
    v_lshrrev_b32 v26, 1, v16        ; (m>>1)&7
    v_xor_b32 v27, v17, v26
    s_and_b32 s49, s32, 1
    s_lshl_b32 s50, s49, 2
    v_xor_b32 v27, s50, v27
    v_lshl_add_u32 v{XA}, v27, 4, v25
    v_xor_b32 v27, 4, v27
    v_lshl_add_u32 v{XA+1}, v27, 4, v25
    v_add_u32 v{XA+2}, 0x10000, v{XA}
    v_add_u32 v{XA+3}, 0x10000, v{XA+1}
    s_lshl_b32 s48, s33, 3
    s_and_b32 s50, s32, 2
    s_lshl_b32 s50, s50, 1
    s_lshl_b32 s49, s49, 13          ; (rg&1)*8192
    v_add_u32 v26, s49, v23""")
    for u in range(4):
        a(f"""s_xor_b32 s51, s50, {2*u}
        s_add_u32 s51, s51, s48
        v_add_u32 v25, s51, v24
        v_xor_b32 v25, v25, v22
        v_lshl_add_u32 v{WA+u}, v25, 4, v26
        v_add_u32 v{WA+4+u}, 0x10000, v{WA+u}""")
    XA1 = 192
    for i in range(4): a(f"v_xor_b32 v{XA1+i}, 0x800, v{XA+i}")
    WA1 = 196
    for i in range(8): a(f"v_xor_b32 v{WA1+i}, 0x2000, v{WA+i}")
    for r in list(range(ACC, S1+4)) + list(range(S2, S2+4)): a(f"v_mov_b32 v{r}, 0")
    a("""v_mov_b32 v28, 0x3f803f80
    v_mov_b32 v29, 0x3f803f80
    v_mov_b32 v30, 0x3f803f80
    v_mov_b32 v31, 0x3f803f80""")
    def read_items(j):
        sl = j % 4; hf = sl >> 1; so = (sl & 1) * 32768; F = FB[j & 1]
        it = []
        for e in range(2):
            it.append(f"ds_read_b128 v[{F+e*8}:{F+e*8+3}], v{XA+hf*2+e} offset:{so}")
            it.append(f"ds_read_b128 v[{F+e*8+4}:{F+e*8+7}], v{XA1+hf*2+e} offset:{so}")
            for u in range(4):
                b = F+16+e*16+u*4
                ad = (WA if e == 0 else WA1)+hf*4+u
                it.append(f"ds_read_b64_tr_b16 v[{b}:{b+1}], v{ad} offset:{so+16384}")
                it.append(f"ds_read_b64_tr_b16 v[{b+2}:{b+3}], v{ad} offset:{so+16384+2048}")
        return it
    a("""s_waitcnt vmcnt(12)
    s_barrier""")
    st()
    for it in read_items(0): a(it)
    waits = [8, 8, 8, 8, 8, 8, 8, 4, 0]
    for j in range(10):
        F = FB[j & 1]
        if j < 9:
            a(f"""s_waitcnt vmcnt({waits[j]}) lgkmcnt(0)
            s_barrier""")
        else:
            a("s_waitcnt lgkmcnt(0)")
        st()
        main = []
        for e in range(2):
            for u in range(4):
                for sset in range(2):
                    c = ACC+sset*16+u*4
                    main.append(f"v_mfma_f32_16x16x32_bf16 v[{c}:{c+3}], v[{F+16+e*16+u*4}:{F+16+e*16+u*4+3}], v[{F+e*8+sset*4}:{F+e*8+sset*4+3}], v[{c}:{c+3}]")
                if u == 2:
                    main.append(f"v_mfma_f32_16x16x32_bf16 v[{S1}:{S1+3}], v[28:31], v[{F+e*8}:{F+e*8+3}], v[{S1}:{S1+3}]")
                if u == 3:
                    main.append(f"v_mfma_f32_16x16x32_bf16 v[{S2}:{S2+3}], v[{F+e*8}:{F+e*8+3}], v[{F+e*8}:{F+e*8+3}], v[{S2}:{S2+3}]")
                if e == 0 and u < 2:
                    c = CSA+u*4
                    main.append(f"v_mfma_f32_16x16x32_bf16 v[{c}:{c+3}], v[{F+16+u*4}:{F+16+u*4+3}], v[28:31], v[{c}:{c+3}]")
        rd = read_items(j+1) if j < 9 else []
        dm = slot_items(j+4) if j <= 5 else []
        dots = []
        if os.environ.get("NODOT"): dots = []
        if os.environ.get("NOTR"): rd = [r for r in rd if "tr_b16" not in r]
        if os.environ.get("NOX"): rd = [r for r in rd if "tr_b16" in r]
        if os.environ.get("NOMFMA"): main = main[:2]
        fill = []
        nr = len(rd)
        for i in range(max(nr, len(dots))):
            if i < nr: fill.append(rd[i])
            if i < len(dots): fill.append(dots[i])
            if i % 5 == 2 and dm: fill.append(dm.pop(0))
        fill += dm
        interleave(a, main, fill)
    st()
    a(f"""s_lshl_b32 s48, s32, 8           ; rg*2*16*8
    s_lshl_b32 s49, s33, 7
    s_add_u32 s48, s48, s49
    v_lshlrev_b32 v3, 3, v16         ; m*8
    v_add_u32 v3, s48, v3
    v_add_u32 v3, {K1_ST}, v3
    v_xor_b32 v7, 0x80, v3           ; set1
    v_and_b32 v4, 3, v16
    v_cmp_eq_u32 vcc, 1, v4
    v_cndmask_b32 v{S1+1}, v{S2}, v{S2+1}, vcc
    v_cmp_eq_u32 vcc, 2, v4
    v_cndmask_b32 v{S1+1}, v{S1+1}, v{S2+2}, vcc
    v_cmp_eq_u32 vcc, 3, v4
    v_cndmask_b32 v{S1+1}, v{S1+1}, v{S2+3}, vcc
    v_lshrrev_b32 v4, 2, v16
    v_cmp_eq_u32 vcc, v4, v17
    s_and_saveexec_b64 s[56:57], vcc
    ds_write_b64 v3, v[{S1}:{S1+1}]
    s_mov_b64 exec, s[56:57]
    s_lshl_b32 s48, s33, 9
    s_and_b32 s49, s32, 2
    s_lshl_b32 s49, s49, 7           ; (rg&2)*128
    s_add_u32 s48, s48, s49
    v_lshlrev_b32 v5, 4, v17
    v_add_u32 v5, s48, v5
    v_add_u32 v5, {K1_CSL}, v5
    v_xor_b32 v8, 0x100, v5
    s_and_b32 s49, s32, 1
    s_lshl_b32 s49, s49, 6
    v_add_u32 v6, s49, v5
    v_cmp_eq_u32 vcc, 0, v16
    s_and_saveexec_b64 s[56:57], vcc""")
    for u in range(2):
        a(f"ds_write_b128 v6, v[{CSA+u*4}:{CSA+u*4+3}] offset:{128*u}")
    a(f"""s_mov_b64 exec, s[56:57]
    s_waitcnt lgkmcnt(0)
    s_barrier""")
    st()
    a(f"""s_cmp_eq_u32 s7, 13
    s_cselect_b32 s48, s33, 0
    s_cmp_lg_u32 s48, 0
    s_cbranch_scc1 K1_END""")
    a(f"""ds_read_b64 v[40:41], v3
    ds_read_b64 v[48:49], v7""")
    CR = 56
    for u in range(4):
        for par in range(2):
            a(f"ds_read_b128 v[{CR+(u*2+par)*4}:{CR+(u*2+par)*4+3}], v{5 if u<2 else 8} offset:{(u&1)*128+par*64}")
    a("s_waitcnt lgkmcnt(8)")
    for sset in range(2):
        b = 40+8*sset
        a(f"""s_mov_b32 s48, 0x3acccccd
        v_mul_f32 v{b}, s48, v{b}
        v_mul_f32 v{b+4}, s48, v{b+1}
        v_fma_f32 v{b+4}, -v{b}, v{b}, v{b+4}
        v_max_f32 v{b+4}, 0, v{b+4}
        v_cvt_pk_bf16_f32 v{b+1}, v{b}, v{b+4}
        v_lshlrev_b32 v{b}, 16, v{b+1}
        v_and_b32 v{b+4}, 0xffff0000, v{b+1}
        v_add_f32 v{b+4}, 0x3727c5ac, v{b+4}
        v_cvt_pk_bf16_f32 v{b+1}, v{b+4}, v{b+4}
        v_lshlrev_b32 v{b+4}, 16, v{b+1}
        v_sqrt_f32 v{b+4}, v{b+4}
        v_cvt_pk_bf16_f32 v{b+1}, v{b+4}, v{b+4}
        v_lshlrev_b32 v{b+1}, 16, v{b+1}
        v_rcp_f32 v{b+2}, v{b+1}
        v_sub_f32 v{b+4}, 0, v{b}
        v_mov_b32 v{b+3}, v{b+2}
        v_mov_b32 v{b+5}, v{b+4}""")
    a(f"""s_lshl_b32 s50, s6, 7
    s_lshl_b32 s48, s32, 5
    s_add_u32 s50, s50, s48
    s_cmp_lg_u32 s7, 0
    s_cbranch_scc1 K1_NOST
    s_lshl_b32 s48, s33, 4
    s_add_u32 s48, s48, s50
    v_add_u32 v9, s48, v16
    v_lshlrev_b32 v9, 3, v9
    v_add_u32 v9, {ST_OFF}, v9
    v_cmp_gt_u32 vcc, 16, v2
    v_mov_b32 v10, 0x80000000
    v_cndmask_b32 v9, v10, v9, vcc
    buffer_store_dwordx2 v[40:41], v9, s[28:31], 0 offen
    K1_NOST:
    s_waitcnt lgkmcnt(0)""")
    for u in range(4):
        for i in range(0, 4, 2):
            a(f"v_pk_add_f32 v[{CR+u*8+i}:{CR+u*8+i+1}], v[{CR+u*8+i}:{CR+u*8+i+1}], v[{CR+u*8+4+i}:{CR+u*8+4+i+1}]")
    a(f"""s_lshl_b32 s48, s6, 1
    s_lshr_b32 s49, s32, 1
    s_add_u32 s48, s48, s49          ; M>>2
    s_mul_i32 s48, s48, 54
    s_lshl_b32 s50, s7, 2
    s_add_u32 s48, s48, s50
    s_lshl_b32 s50, s33, 1
    s_add_u32 s48, s48, s50          ; + q0
    s_add_u32 s48, s48, s49
    s_lshl_b32 s48, s48, 12
    s_and_b32 s50, s32, 1
    s_lshl_b32 s50, s50, 11
    s_add_u32 s48, s48, s50
    s_lshl_b32 s50, s33, 10
    s_add_u32 s48, s48, s50
    s_xor_b32 s49, s48, 0x1000
    s_xor_b32 s50, s48, 0x400
    s_xor_b32 s51, s49, 0x400
    s_mov_b32 s58, 0xbfb8aa3b
    s_mov_b32 s59, 0xbfb8aa3b
    v_lshlrev_b32 v31, 4, v2""")
    T = 88
    for sset in range(2):
        mb = 40+8*sset
        for pr in range(2):
            o = 96+(sset*2+pr)*4
            for uu in range(2):
                u = 2*pr+uu
                c = ACC+sset*16+u*4
                for i in range(0, 4, 2):
                    a(f"""v_pk_fma_f32 v[{c+i}:{c+i+1}], v[{mb+4}:{mb+5}], v[{CR+u*8+i}:{CR+u*8+i+1}], v[{c+i}:{c+i+1}]
                    v_pk_mul_f32 v[{c+i}:{c+i+1}], v[{c+i}:{c+i+1}], v[{mb+2}:{mb+3}]""")
                round_pair(a, c, c+1, T)
                round_pair(a, c+2, c+3, T+1)
                a(f"""v_pk_mul_f32 v[{T+2}:{T+3}], v[{c}:{c+1}], s[58:59]
                v_pk_mul_f32 v[{T+4}:{T+5}], v[{c+2}:{c+3}], s[58:59]
                v_exp_f32 v{T+2}, v{T+2}
                v_exp_f32 v{T+3}, v{T+3}
                v_exp_f32 v{T+4}, v{T+4}
                v_exp_f32 v{T+5}, v{T+5}
                v_pk_add_f32 v[{T+2}:{T+3}], v[{T+2}:{T+3}], 1.0 op_sel_hi:[1,0]
                v_pk_add_f32 v[{T+4}:{T+5}], v[{T+4}:{T+5}], 1.0 op_sel_hi:[1,0]
                v_rcp_f32 v{T+2}, v{T+2}
                v_rcp_f32 v{T+3}, v{T+3}
                v_rcp_f32 v{T+4}, v{T+4}
                v_rcp_f32 v{T+5}, v{T+5}
                v_pk_mul_f32 v[{T+2}:{T+3}], v[{T+2}:{T+3}], v[{c}:{c+1}]
                v_pk_mul_f32 v[{T+4}:{T+5}], v[{T+4}:{T+5}], v[{c+2}:{c+3}]
                v_cvt_pk_bf16_f32 v{o+2*uu}, v{T+2}, v{T+3}
                v_cvt_pk_bf16_f32 v{o+2*uu+1}, v{T+4}, v{T+5}""")
            so = ['s48', 's49', 's50', 's51'][sset*2+pr]
            a(f"buffer_store_dwordx4 v[{o}:{o+3}], v31, s[28:31], {so} offen")
    st()
    if STAMP: a("s_waitcnt vmcnt(0)")
    st()
    st.flush("s3")
    a("s_endpgm")
    a("K1_SPARE:")
    srd(a, 16, 38, XB)
    srd(a, 20, 40, XB)
    srd(a, 24, 42, 5120)
    srd(a, 64, 46, 640*1728*2)
    a(f"""v_and_b32 v15, 7, v13
    v_and_b32 v18, 8, v13
    v_lshlrev_b32 v18, 1, v18
    v_or_b32 v15, v15, v18
    v_and_b32 v18, 16, v13
    v_lshrrev_b32 v18, 1, v18
    v_or_b32 v15, v15, v18
    s_movk_i32 s48, 1280
    v_mul_lo_u32 v15, v15, s48
    v_lshl_add_u32 v15, v14, 4, v15
    s_sub_u32 s48, s5, 28
    s_lshl_b32 s48, s48, 3
    s_add_u32 s51, s48, s4
    s_mul_i32 s54, s51, {32*1280}
    s_lshl_b32 s53, s3, 10
    v_and_b32 v4, 31, v0
    v_lshrrev_b32 v3, 5, v0
    s_lshl_b32 s34, s51, 6
    v_lshlrev_b32 v5, 2, v3
    v_add_u32 v5, s34, v5            ; r0
    s_movk_i32 s48, 1280
    v_mul_lo_u32 v7, v5, s48
    v_lshl_add_u32 v7, v4, 3, v7     ; baseB = r0*1280 + c4l*8
    v_subrev_u32 v8, 3840, v7        ; baseA
    v_mov_b32 v9, 0x80000000
    v_cmp_eq_u32 vcc, 0, v5
    v_cndmask_b32 v8, v8, v9, vcc
    v_lshlrev_b32 v10, 5, v4
    v_mul_u32_u24 v11, {4*136}, v4
    v_lshlrev_b32 v12, 3, v3
    v_sub_u32 v12, 120, v12          ; (15-rg16)*8
    v_add_u32 v11, v11, v12
    v_add_u32 v11, {K1_KVS}, v11""")
    RB = 40
    for r in range(5):
        B = RB + 30*r
        a(f"s_movk_i32 s48, {256*r}\ns_movk_i32 s49, {1024*r}")
        for q in range(3):
            a(f"buffer_load_dwordx2 v[{B+2*q}:{B+2*q+1}], v8, s[16:19], s48 offen offset:{1280*q}")
        for q in range(4):
            a(f"buffer_load_dwordx2 v[{B+6+2*q}:{B+7+2*q}], v7, s[16:19], s48 offen offset:{1280*q}")
        for q in range(4):
            a(f"buffer_load_dwordx2 v[{B+14+2*q}:{B+15+2*q}], v7, s[20:23], s48 offen offset:{1280*q}")
        a(f"""buffer_load_dwordx4 v[{B+22}:{B+25}], v10, s[24:27], s49 offen
        buffer_load_dwordx4 v[{B+26}:{B+29}], v10, s[24:27], s49 offen offset:16""")
        if r == 0:
            for u in range(2):
                for sb in range(5):
                    a(f"""s_add_u32 m0, s53, {(u*5+sb)*8192}
                    s_add_u32 s55, s54, {u*32*32*1280 + sb*256}
                    buffer_load_dwordx4 v15, s[64:67], s55 offen lds""")
        if r == 2: break
    a(f"""s_lshl_b32 s48, s3, 1
    v_add_u32 v25, s48, v24
    v_xor_b32 v25, v25, v22
    v_lshl_add_u32 v25, v25, 4, v23
    v_add_u32 v26, 0x8000, v25
    v_add_u32 v27, 0x10000, v25
    v_mov_b32 v28, 0x3f803f80
    v_lshrrev_b32 v29, 2, v0
    v_and_b32 v30, 3, v0
    v_mul_u32_u24 v32, 136, v29
    v_lshl_add_u32 v32, v30, 5, v32
    v_add_u32 v32, {K1_KVS}, v32
    v_lshlrev_b32 v33, 12, v29
    v_lshl_add_u32 v33, v30, 5, v33
    s_lshl_b32 s48, s51, 7
    s_sub_u32 s57, {KVT_OFF + 3968}, s48
    v_lshlrev_b32 v31, 4, v2""")
    W = 190; P = 206; Q = 214; O = 220
    def kv_round(r):
        B = RB + 30*r
        for c in range(4):
            dw = c >> 1
            s0, s1 = B+22+2*c, B+23+2*c
            if c & 1:
                a(f"""v_lshlrev_b32 v{W}, 16, v{s0}
                v_and_b32 v{W+1}, 0xffff0000, v{s0}
                v_lshlrev_b32 v{W+2}, 16, v{s1}
                v_and_b32 v{W+3}, 0xffff0000, v{s1}""")
            else:
                a(f"""v_and_b32 v{W}, 0xffff, v{s0}
                v_lshrrev_b32 v{W+1}, 16, v{s0}
                v_and_b32 v{W+2}, 0xffff, v{s1}
                v_lshrrev_b32 v{W+3}, 16, v{s1}""")
            for i in range(4): a(f"v_dot2_f32_bf16 v{P+i}, v{B+2*i+dw}, v{W+3}, 0")
            for t in range(1, 4):
                for i in range(4): a(f"v_dot2_f32_bf16 v{P+4+i}, v{B+2*(i+t)+dw}, v{W+3-t}, 0")
                for i in range(4): a(f"v_cvt_pk_bf16_f32 v{Q+i}, v{P+i}, v{P+4+i}")
                for i in range(4): a(f"v_dot2_f32_bf16 v{P+i}, v{Q+i}, v28, 0")
            for i in range(4):
                if c & 1: a(f"v_cvt_pk_bf16_f32 v{Q+i}, 0, v{P+i}")
                else: a(f"v_cvt_pk_bf16_f32 v{Q+i}, v{P+i}, 0")
            for i in range(4): a(f"v_dot2_f32_bf16 v{P+i}, v{Q+i}, v{B+14+2*i+dw}, 0")
            a(f"""v_cvt_pk_bf16_f32 v{O}, v{P+3}, v{P+2}
            v_cvt_pk_bf16_f32 v{O+1}, v{P+1}, v{P}
            ds_write_b64 v11, v[{O}:{O+1}] offset:{136*c + (r&1)*128*136}""")
    def kv_store(r):
        so = (r&1)*128*136
        a(f"""ds_read_b64 v[{W}:{W+1}], v32 offset:{so}
        ds_read_b64 v[{W+2}:{W+3}], v32 offset:{so+8}
        ds_read_b64 v[{W+4}:{W+5}], v32 offset:{so+16}
        ds_read_b64 v[{W+6}:{W+7}], v32 offset:{so+24}
        s_add_u32 s48, s57, {r*128*4096}
        s_waitcnt lgkmcnt(0)
        buffer_store_dwordx4 v[{W}:{W+3}], v33, s[28:31], s48 offen
        buffer_store_dwordx4 v[{W+4}:{W+7}], v33, s[28:31], s48 offen offset:16""")
    def loads(r):
        B = RB + 30*r
        a(f"s_movk_i32 s48, {256*r}\ns_movk_i32 s49, {1024*r}")
        for q in range(3):
            a(f"buffer_load_dwordx2 v[{B+2*q}:{B+2*q+1}], v8, s[16:19], s48 offen offset:{1280*q}")
        for q in range(4):
            a(f"buffer_load_dwordx2 v[{B+6+2*q}:{B+7+2*q}], v7, s[16:19], s48 offen offset:{1280*q}")
        for q in range(4):
            a(f"buffer_load_dwordx2 v[{B+14+2*q}:{B+15+2*q}], v7, s[20:23], s48 offen offset:{1280*q}")
        a(f"""buffer_load_dwordx4 v[{B+22}:{B+25}], v10, s[24:27], s49 offen
        buffer_load_dwordx4 v[{B+26}:{B+29}], v10, s[24:27], s49 offen offset:16""")
    st.n = 1
    st()
    a("s_waitcnt vmcnt(36)")
    st()
    loads(3)
    st()
    kv_round(0)
    st()
    a("""s_waitcnt vmcnt(39) lgkmcnt(0)
    s_barrier""")
    st()
    loads(4)
    st()
    kv_store(0)
    st()
    WP = 224
    for u in range(2):
        if u == 1:
            a("""s_cmp_ge_u32 s51, 22
            s_cbranch_scc1 K1_NOW2B""")
        for sb in range(5):
            n = u*5+sb
            base = [25, 26, 27][n // 4]
            off = (n % 4) * 8192
            a(f"""ds_read_b64_tr_b16 v[{WP+4*sb}:{WP+1+4*sb}], v{base} offset:{off}
            ds_read_b64_tr_b16 v[{WP+2+4*sb}:{WP+3+4*sb}], v{base} offset:{off+2048}""")
        for sb in range(5):
            a(f"""s_add_u32 s48, s3, {8*sb}
            s_mul_i32 s49, s48, 52
            s_lshr_b32 s49, s49, 8
            s_mul_i32 s50, s49, 5
            s_sub_u32 s50, s48, s50
            s_mul_i32 s49, s49, 54
            s_add_u32 s49, s49, s51
            s_add_u32 s49, s49, {32*u}
            s_mul_i32 s49, s49, 5
            s_add_u32 s49, s49, s50
            s_lshl_b32 s49, s49, 10
            s_add_u32 s49, s49, {W2P_OFF}
            s_waitcnt lgkmcnt({2*(4-sb)})
            buffer_store_dwordx4 v[{WP+4*sb}:{WP+3+4*sb}], v31, s[28:31], s49 offen""")
    a("K1_NOW2B:")
    st()
    a("s_waitcnt vmcnt(46)")
    st()
    kv_round(1)
    st()
    a("s_waitcnt lgkmcnt(0)\ns_barrier")
    st()
    kv_store(1)
    st()
    a("s_waitcnt vmcnt(35)")
    st()
    kv_round(2)
    st()
    a("s_waitcnt lgkmcnt(0)\ns_barrier")
    kv_store(2)
    a("s_waitcnt vmcnt(24)")
    kv_round(3)
    a("s_waitcnt lgkmcnt(0)\ns_barrier")
    kv_store(3)
    a("s_waitcnt vmcnt(13)")
    kv_round(4)
    a("s_waitcnt lgkmcnt(0)\ns_barrier")
    kv_store(4)
    st()
    if STAMP: a("s_waitcnt vmcnt(0)")
    st()
    st2 = Stamper(a); st2.flush("s3")
    a("""K1_END:
    s_endpgm""")

CV_CP = 4160
CV_KV = 4*CV_CP
CV_WAVE = 21248
def conv_body(a, s_ch, s_wbase, tag):
    LA = 40
    a(f"""s_lshl_b32 s48, {s_ch}, 12
    s_and_b32 s49, {s_ch}, 0xfffffffe
    s_lshl_b32 s49, s49, 1
    s_add_u32 s50, s40, s49
    s_addc_u32 s51, s41, 0
    s_load_dword s52, s[50:51], 0
    v_lshlrev_b32 v3, 4, v2""")
    for i in range(4):
        a(f"""buffer_load_dwordx4 v[{LA+12*i}:{LA+12*i+3}], v3, s[8:11], s48 offen offset:{1024*i}
        buffer_load_dwordx4 v[{LA+12*i+4}:{LA+12*i+7}], v3, s[8:11], s48 offen offset:{1024*i+4}
        buffer_load_dwordx4 v[{LA+12*i+8}:{LA+12*i+11}], v3, s[8:11], s48 offen offset:{1024*i+8}""")
    a(f"s_add_u32 s49, s48, {KVT_OFF}")
    a(f"""s_add_u32 m0, {s_wbase}, {CV_KV}
    s_nop 0""")
    for i in range(4):
        a(f"buffer_load_dwordx4 v3, s[28:31], s49 offen offset:{1024*i} lds")
    a(f"""v_add_u32 v4, {s_wbase}, v3
    v_mov_b32 v8, 0
    v_mov_b32 v9, 0
    v_mov_b32 v10, 0
    v_mov_b32 v11, 0
    v_cmp_gt_u32 vcc, 30, v2
    s_and_saveexec_b64 s[56:57], vcc
    ds_write_b128 v4, v[8:11] offset:{CV_KV+4096}
    s_mov_b64 exec, s[56:57]
    v_and_b32 v16, 15, v2
    v_lshrrev_b32 v17, 4, v2
    ; A addr
    v_add_u32 v5, 1, v16
    v_and_b32 v5, 3, v5              ; c
    v_mul_u32_u24 v6, {CV_CP-2}, v5  ; c*4160 - 2c
    v_lshl_add_u32 v6, v16, 1, v6
    v_lshlrev_b32 v7, 4, v17
    v_sub_u32 v6, v6, v7
    v_add_u32 v6, 50, v6
    v_add_u32 v6, {s_wbase}, v6      ; v6 = A base
    ; B addr
    v_lshlrev_b32 v12, 5, v16
    v_add_u32 v12, v12, v7
    v_sub_u32 v12, {CV_KV+528}, v12
    v_add_u32 v12, {s_wbase}, v12    ; v12 = B base
    v_lshlrev_b32 v13, 5, v16
    v_lshl_add_u32 v13, v17, 3, v13
    v_sub_u32 v14, {CV_KV+504}, v13
    v_add_u32 v14, {s_wbase}, v14
    v_lshrrev_b32 v15, 3, v2
    v_mul_u32_u24 v15, {CV_CP}, v15
    v_and_b32 v18, 7, v2
    v_lshl_add_u32 v15, v18, 2, v15
    v_add_u32 v15, {s_wbase}, v15""")
    T = 88
    for i in range(4):
        A_, B_, C_ = LA+12*i, LA+12*i+4, LA+12*i+8
        a(f"s_waitcnt vmcnt({4+3*(3-i)})")
        if i == 0:
            a(f"""v_readfirstlane_b32 s53, v{A_}
            v_readfirstlane_b32 s54, v{A_+1}
            v_mov_b32 v19, 0
            s_lshl_b32 s55, s53, 16
            s_lshr_b32 s58, s53, 16
            s_lshl_b32 s54, s54, 16
            s_or_b32 s58, s58, s54
            v_writelane_b32 v19, s55, 15
            v_writelane_b32 v19, s53, 23
            v_writelane_b32 v19, s55, 30
            v_writelane_b32 v19, s58, 31
            v_cmp_gt_u32 vcc, 32, v2
            s_and_saveexec_b64 s[56:57], vcc
            ds_write_b32 v15, v19
            s_mov_b64 exec, s[56:57]""")
        a(f"""ds_write_b128 v4, v[{A_}:{A_+3}] offset:{32+1024*i}
        ds_write_b128 v4, v[{B_}:{B_+3}] offset:{2*CV_CP+32+1024*i}""")
        for d in range(4):
            a(f"""v_alignbit_b32 v{T+d}, v{B_+d}, v{A_+d}, 16
            v_alignbit_b32 v{T+4+d}, v{C_+d}, v{B_+d}, 16""")
        a(f"""ds_write_b128 v4, v[{T}:{T+3}] offset:{CV_CP+32+1024*i}
        ds_write_b128 v4, v[{T+4}:{T+7}] offset:{3*CV_CP+32+1024*i}""")
        T = 96 if T == 88 else 88
    ACC = 20
    FR = [52, 116]
    a("s_waitcnt vmcnt(0) lgkmcnt(0)")
    for r in range(ACC, ACC+32): a(f"v_mov_b32 v{r}, 0")
    def reads(rho):
        F = FR[rho & 1]; it = []
        for z in range(8):
            it.append(f"ds_read_b128 v[{F+32+4*z}:{F+35+4*z}], v12 offset:{64*(56-8*z+rho)}")
            it.append(f"ds_read_b64 v[{F+4*z}:{F+1+4*z}], v6 offset:{64*(8*z+rho)}")
            it.append(f"ds_read_b64 v[{F+2+4*z}:{F+3+4*z}], v6 offset:{64*(8*z+rho)+8}")
        return it
    for it in reads(0): a(it)
    for rho in range(8):
        F = FR[rho & 1]
        a("s_waitcnt lgkmcnt(0)")
        main = []
        for q in range(8):
            for t in range(q, 8):
                e = t - q
                c = ACC+4*t
                main.append(f"v_mfma_f32_16x16x32_bf16 v[{c}:{c+3}], v[{F+4*q}:{F+4*q+3}], v[{F+32+4*e}:{F+35+4*e}], v[{c}:{c+3}]")
        interleave(a, main, reads(rho+1) if rho < 7 else [])
    KVR = 52
    for t in range(8):
        a(f"ds_read_b64 v[{KVR+2*t}:{KVR+2*t+1}], v14 offset:{512*(7-t)}")
    a(f"""s_and_b32 s53, {s_ch}, 1
    s_lshl_b32 s53, s53, 4
    s_lshr_b32 s52, s52, s53
    s_lshl_b32 s52, s52, 16          ; D as f32
    s_add_u32 s49, s48, {Y2T_OFF}
    s_waitcnt lgkmcnt(0)""")
    P = 70
    for t in range(8):
        c = ACC+4*t; d0, d1 = KVR+2*t, KVR+2*t+1
        a(f"""v_and_b32 v{P}, 0xffff0000, v{d1}
        v_lshlrev_b32 v{P+1}, 16, v{d1}
        v_and_b32 v{P+2}, 0xffff0000, v{d0}
        v_lshlrev_b32 v{P+3}, 16, v{d0}
        v_mul_f32 v{P}, s52, v{P}
        v_mul_f32 v{P+1}, s52, v{P+1}
        v_mul_f32 v{P+2}, s52, v{P+2}
        v_mul_f32 v{P+3}, s52, v{P+3}""")
        round_pair(a, P, P+1, P+4)
        round_pair(a, P+2, P+3, P+5)
        round_pair(a, c, c+1, P+4)
        round_pair(a, c+2, c+3, P+5)
        o = 80 + 2*(t & 3)
        a(f"""v_add_f32 v{c}, v{c}, v{P}
        v_add_f32 v{c+1}, v{c+1}, v{P+1}
        v_add_f32 v{c+2}, v{c+2}, v{P+2}
        v_add_f32 v{c+3}, v{c+3}, v{P+3}
        v_cvt_pk_bf16_f32 v{o}, v{c}, v{c+1}
        v_cvt_pk_bf16_f32 v{o+1}, v{c+2}, v{c+3}
        buffer_store_dwordx2 v[{o}:{o+1}], v13, s[28:31], s49 offen offset:{512*t}""")

K2_LDS = 4*CV_WAVE
def gen_k2(a):
    a(f"""k2_kernel:
    s_cmp_ge_u32 s2, 160
    s_cbranch_scc1 K2_END
    s_load_dwordx4 s[36:39], s[0:1], 32
    s_load_dwordx2 s[60:61], s[0:1], 88
    v_lshrrev_b32 v1, 6, v0
    v_and_b32 v2, 63, v0
    v_readfirstlane_b32 s3, v1
    s_lshl_b32 s4, s2, 2
    s_add_u32 s4, s4, s3
    s_mul_i32 s5, s3, {CV_WAVE}
    s_waitcnt lgkmcnt(0)
    s_mov_b32 s40, s38
    s_mov_b32 s41, s39""")
    srd(a, 8, 36, 640*4096)
    srd(a, 28, 60, WS_BYTES)
    conv_body(a, "s4", "s5", "k2")
    a("""K2_END:
    s_endpgm""")

G2_RED = 0
G2_X = 61440
G2_Y = G2_X + 12288
K3_LDS = G2_Y + 12288
def gen_k3(a):
    ACC = 16
    STG = [96, 132, 168, 204]
    a(f"""k3_kernel:
    s_cmp_ge_u32 s2, 256
    s_cbranch_scc1 K3_END
    s_load_dwordx2 s[36:37], s[0:1], 0
    s_load_dwordx2 s[38:39], s[0:1], 72
    s_load_dwordx2 s[60:61], s[0:1], 88
    v_lshrrev_b32 v1, 6, v0
    v_and_b32 v2, 63, v0
    v_readfirstlane_b32 s3, v1
    s_and_b32 s4, s2, 7
    s_lshr_b32 s5, s2, 3
    s_lshl_b32 s6, s4, 2
    s_lshr_b32 s7, s5, 3
    s_add_u32 s6, s6, s7             ; rb64
    s_and_b32 s7, s5, 7              ; cb
    s_mov_b32 s90, 0xbfb8aa3b
    s_waitcnt lgkmcnt(0)""")
    st = Stamper(a)
    if STAMP: a("v_mov_b32 v250, 0")
    st()
    srd(a, 8, 36, XB)
    srd(a, 12, 38, XB)
    srd(a, 28, 60, WS_BYTES)
    a(f"""v_lshlrev_b32 v3, 4, v2          ; lane*16
    v_add_u32 v8, 0x1000, v3""")
    for sl in range(4):
        a(f"""s_add_u32 s48, s3, {sl}
        s_and_b32 s48, s48, 3
        s_lshl_b32 s48, s48, 10
        v_add_u32 v{4+sl}, s48, v3""")
    a(f"""s_mul_i32 s50, s6, 54
    s_add_u32 s50, s50, s3
    s_lshl_b32 s50, s50, 12          ; h soffset (q = w)
    s_mul_i32 s51, s7, 54
    s_add_u32 s51, s51, s3
    s_mul_i32 s51, s51, 5120
    s_add_u32 s51, s51, {W2P_OFF}    ; w2p soffset
    s_cmp_ge_u32 s3, 2
    s_cselect_b32 s52, 0x40000000, 0""")
    def stage_items(it):
        S = STG[it % 4]; L = []
        for sl in range(4):
            L.append(f"buffer_load_dwordx4 v[{S+4*sl}:{S+4*sl+3}], v{4+sl}, s[28:31], s50 offen")
        for ct in range(4):
            L.append(f"buffer_load_dwordx4 v[{S+16+4*ct}:{S+19+4*ct}], v3, s[28:31], s51 offen offset:{1024*ct}")
        adv = f"""s_add_u32 s50, s50, {4*4096}
        s_add_u32 s51, s51, {4*5120}"""
        if it == 12:
            adv += "\ns_add_u32 s50, s50, s52\ns_add_u32 s51, s51, s52"
        L.append(f"buffer_load_dwordx4 v[{S+32}:{S+35}], v8, s[28:31], s51 offen\n" + adv)
        return L
    for it in range(4):
        for x in stage_items(it): a(x)
    a(f"""v_and_b32 v9, 15, v2             ; m
    v_lshrrev_b32 v10, 4, v2         ; g
    v_mov_b32 v15, 0x80000000
    s_lshl_b32 s53, s6, 6
    s_lshl_b32 s48, s3, 4
    s_add_u32 s53, s53, s48
    s_mul_i32 s54, s53, 1280
    s_mul_i32 s48, s7, 160
    s_add_u32 s54, s54, s48
    s_mul_i32 s55, s3, 3072
    s_add_u32 s55, s55, {G2_X}""")
    XO = 240
    for n in range(3):
        a(f"""v_add_u32 v11, {64*n}, v2
        v_mul_u32_u24 v12, 6554, v11
        v_lshrrev_b32 v12, 16, v12       ; /10
        v_mul_u32_u24 v13, 10, v12
        v_sub_u32 v13, v11, v13
        v_mul_u32_u24 v12, 1280, v12
        v_lshl_add_u32 v{XO+n}, v13, 4, v12""")
    a(f"""v_cmp_gt_u32 vcc, 32, v2
    v_cndmask_b32 v{XO+2}, v15, v{XO+2}, vcc""")
    for n in range(3):
        a(f"""s_add_u32 m0, s55, {1024*n}
        s_nop 0
        buffer_load_dwordx4 v{XO+n}, s[8:11], s54 offen lds""")
    a(f"""s_mul_i32 s48, s7, {80*4096}
    s_lshl_b32 s49, s6, 7
    s_add_u32 s48, s48, s49
    s_add_u32 s58, s48, {Y2T_OFF}
    v_lshrrev_b32 v11, 3, v0
    v_lshlrev_b32 v11, 12, v11
    v_and_b32 v12, 7, v0
    v_lshl_add_u32 v11, v12, 4, v11
    v_cmp_gt_u32 vcc, 128, v0
    v_cndmask_b32 v12, v15, v11, vcc
    s_lshl_b32 s59, s3, 10
    s_add_u32 s59, s59, {G2_Y}""")
    for n in range(3):
        a(f"""s_add_u32 m0, s59, {4096*n}
        s_add_u32 s48, s58, {32*4096*n}
        buffer_load_dwordx4 v{11 if n<2 else 12}, s[28:31], s48 offen lds""")
    a(f"""v_add_u32 v13, s53, v9
    v_lshlrev_b32 v13, 3, v13
    v_add_u32 v13, {ST_OFF}, v13
    buffer_load_dwordx2 v[244:245], v13, s[28:31], 0 offen""")
    for r in range(ACC, ACC+80): a(f"v_mov_b32 v{r}, 0")
    st()
    for it in range(14):
        S = STG[it % 4]
        if it < 4: younger = 9*(3-it) + 7 + 9*it if it > 0 else 27+7
        else: younger = 9*min(3, 13-it)
        if it < 4: younger = 9*(3-it) + 7 + 9*it
        younger = min(younger, 9*(13-it) + (7 if it < 4 else 0))
        a(f"s_waitcnt vmcnt({younger})")
        main = []
        for ct in range(5):
            for sl in range(4):
                c = ACC+sl*20+ct*4
                main.append(f"v_mfma_f32_16x16x32_bf16 v[{c}:{c+3}], v[{S+16+4*ct}:{S+19+4*ct}], v[{S+4*sl}:{S+4*sl+3}], v[{c}:{c+3}]")
        for x in main: a(x)
        if it + 4 < 14:
            for x in stage_items(it+4): a(x)
    st()
    a(f"""s_mul_i32 s48, s3, 15360
    v_add_u32 v11, s48, v3""")
    for sl in range(1, 4):
        for ct in range(5):
            c = ACC+sl*20+ct*4
            a(f"ds_write_b128 v11, v[{c}:{c+3}] offset:{(sl-1)*5120+ct*1024}")
    a("""s_waitcnt vmcnt(0) lgkmcnt(0)
    s_barrier""")
    st()
    R = 96
    for sl in range(1, 4):
        a(f"""s_sub_u32 s48, s3, {sl}
        s_and_b32 s48, s48, 3
        s_mul_i32 s48, s48, 15360
        v_add_u32 v{11+sl}, s48, v3""")
        for ct in range(5):
            a(f"ds_read_b128 v[{R+(sl-1)*20+ct*4}:{R+(sl-1)*20+ct*4+3}], v{11+sl} offset:{(sl-1)*5120+ct*1024}")
    XR = 160; YR = 170
    a(f"""v_mul_u32_u24 v11, 160, v9
    v_lshl_add_u32 v11, v10, 3, v11
    v_add_u32 v11, s55, v11          ; x addr: m*160 + 8g
    v_lshrrev_b32 v12, 2, v9         ; r
    v_lshl_add_u32 v12, v10, 2, v12  ; 4g + r
    v_lshlrev_b32 v12, 7, v12
    v_and_b32 v13, 3, v2
    v_lshl_add_u32 v12, v13, 3, v12
    s_lshl_b32 s48, s3, 5
    s_add_u32 s48, s48, {G2_Y}
    v_add_u32 v12, s48, v12""")
    for ct in range(5):
        a(f"""ds_read_b64 v[{XR+2*ct}:{XR+2*ct+1}], v11 offset:{32*ct}
        ds_read_b64_tr_b16 v[{YR+2*ct}:{YR+2*ct+1}], v12 offset:{2048*ct}""")
    a("""v_rcp_f32 v246, v245
    s_waitcnt lgkmcnt(10)""")
    for ct in range(5):
        c = ACC+ct*4
        for i in range(4):
            a(f"""v_add_f32 v{c+i}, v{c+i}, v{R+ct*4+i}
            v_add_f32 v{R+20+ct*4+i}, v{R+20+ct*4+i}, v{R+40+ct*4+i}
            v_add_f32 v{c+i}, v{c+i}, v{R+20+ct*4+i}""")
    a("s_waitcnt lgkmcnt(0)")
    T = 180
    for ct in range(5):
        c = ACC+ct*4
        round_pair(a, c, c+1, T)
        round_pair(a, c+2, c+3, T+1)
        silu_pair(a, c, c+1, T+2, T+3, T+6)
        silu_pair(a, c+2, c+3, T+4, T+5, T+7)
        X = T+8; Y = T+12; N = T+16
        a(f"""v_lshlrev_b32 v{c}, 16, v{T+6}
        v_and_b32 v{c+1}, 0xffff0000, v{T+6}
        v_lshlrev_b32 v{c+2}, 16, v{T+7}
        v_and_b32 v{c+3}, 0xffff0000, v{T+7}
        v_lshlrev_b32 v{X}, 16, v{XR+2*ct}
        v_and_b32 v{X+1}, 0xffff0000, v{XR+2*ct}
        v_lshlrev_b32 v{X+2}, 16, v{XR+2*ct+1}
        v_and_b32 v{X+3}, 0xffff0000, v{XR+2*ct+1}
        v_lshlrev_b32 v{Y}, 16, v{YR+2*ct}
        v_and_b32 v{Y+1}, 0xffff0000, v{YR+2*ct}
        v_lshlrev_b32 v{Y+2}, 16, v{YR+2*ct+1}
        v_and_b32 v{Y+3}, 0xffff0000, v{YR+2*ct+1}""")
        for i in range(4): a(f"v_sub_f32 v{N+i}, v{X+i}, v244")
        round_pair(a, N, N+1, T); round_pair(a, N+2, N+3, T+1)
        for i in range(4): a(f"v_mul_f32 v{N+i}, v{N+i}, v246")
        round_pair(a, N, N+1, T); round_pair(a, N+2, N+3, T+1)
        for i in range(4): a(f"v_mul_f32 v{N+i}, v{N+i}, v{Y+i}")
        round_pair(a, N, N+1, T); round_pair(a, N+2, N+3, T+1)
        for i in range(4): a(f"v_mul_f32 v{N+i}, v{N+i}, v{c+i}")
        round_pair(a, N, N+1, T); round_pair(a, N+2, N+3, T+1)
        for i in range(4): a(f"v_add_f32 v{N+i}, v{N+i}, v{X+i}")
        a(f"""v_cvt_pk_bf16_f32 v{T+2}, v{N}, v{N+1}
        v_cvt_pk_bf16_f32 v{T+3}, v{N+2}, v{N+3}
        ds_write_b64 v11, v[{T+2}:{T+3}] offset:{32*ct}""")
    a(f"""v_add_u32 v12, s55, v3
    s_waitcnt lgkmcnt(0)
    ds_read_b128 v[96:99], v12
    ds_read_b128 v[100:103], v12 offset:1024
    ds_read_b128 v[104:107], v12 offset:2048""")
    for n in range(3):
        a(f"""s_waitcnt lgkmcnt({2-n})
        buffer_store_dwordx4 v[{96+4*n}:{99+4*n}], v{XO+n}, s[12:15], s54 offen""")
    st()
    if STAMP: a("s_waitcnt vmcnt(0)")
    st()
    st.flush("s3")
    a("""K3_END:
    s_endpgm""")

def kd(name, vgpr, sgpr=102):
    acc = (vgpr+3)//4*4
    return f""".section .rodata,"a"
.p2align 6
.amdhsa_kernel {name}
  .amdhsa_next_free_vgpr {vgpr}
  .amdhsa_next_free_sgpr {sgpr}
  .amdhsa_accum_offset {acc}
  .amdhsa_group_segment_fixed_size 0
  .amdhsa_kernarg_size 96
  .amdhsa_user_sgpr_count 2
  .amdhsa_user_sgpr_kernarg_segment_ptr 1
  .amdhsa_system_sgpr_workgroup_id_x 1
  .amdhsa_float_denorm_mode_32 3
  .amdhsa_float_denorm_mode_16_64 3
.end_amdhsa_kernel
"""

def main():
    out = []
    launches = [("k1_kernel", 256, 512, K1_LDS), ("k2_kernel", 160, 256, K2_LDS), ("k3_kernel", 256, 256, K3_LDS)]
    for n, g, b, l in launches:
        out.append(f"; @launch kernel={n} grid=({g},1,1) block=({b},1,1) lds={l}")
    out.append('.amdgcn_target "amdgcn-amd-amdhsa--gfx950"\n.text')
    kernels = [("k1_kernel", gen_k1, 256 if STAMP else 248), ("k2_kernel", gen_k2, 184), ("k3_kernel", gen_k3, 256 if STAMP else 248)]
    for n, f, v in kernels:
        a = Asm()
        out.append(f".globl {n}\n.p2align 8\n.type {n},@function")
        f(a)
        out.append(a.text())
    for n, f, v in kernels:
        out.append(kd(n, v))
    open(sys.argv[1] if len(sys.argv) > 1 else f"cdna_kernels/{NAME}.s", "w").write("\n".join(out))
main()
```
